```python
import torch

def _softmax(x, axis=-1):
    return torch.softmax(x, dim=axis)
def _gelu(x):
    return torch.nn.functional.gelu(x, approximate="tanh")
def _silu(x):
    return torch.nn.functional.silu(x)
def _sigmoid(x):
    return torch.sigmoid(x)
def _layernorm(x, axis=-1, eps=1e-5):
    m = x.mean(dim=axis, keepdim=True)
    v = x.var(dim=axis, keepdim=True, unbiased=False)
    return (x - m) / torch.sqrt(v + eps)
def _scatter_add(tgt, idx, src, axis=0):
    return tgt.clone().index_add_(axis, idx, src)
def _segment_sum(src, seg, n):
    out = torch.zeros((n,) + src.shape[1:], dtype=src.dtype)
    return out.index_add_(0, seg, src)
def _pad(x, pw):
    flat = tuple(v for pair in reversed(pw) for v in pair)
    return torch.nn.functional.pad(x, flat)

kernel_name = 'standalone__gqa_block_cached__near_ridge'

def setup_inputs():

    _w = (lambda a: (lambda t: t.to(torch.bfloat16) if t.is_floating_point() else t)(torch.as_tensor(a)))
    B, Sq, D = 32, 144, 640
    Hq, Hkv, Sk, Dh = 32, 32, 512, 128
    assert Hq % Hkv == 0, (Hq, Hkv)
    return {
        "x": _w((lambda *s: torch.randn(*s, dtype=torch.bfloat16) * 0.8)(B, Sq, D)),
        "k_cache": _w((lambda *s: torch.randn(*s, dtype=torch.bfloat16) * 0.8)(B, Hkv, Sk, Dh)),
        "v_cache": _w((lambda *s: torch.randn(*s, dtype=torch.bfloat16) * 0.05)(B, Hkv, Sk, Dh)),
        "wq": _w((lambda *s: torch.randn(*s, dtype=torch.bfloat16) * 0.8)(D, Hq * Dh) * (D ** -0.5)),
        "wo": _w((lambda *s: torch.randn(*s, dtype=torch.bfloat16) * 0.05)(Hq * Dh, D) * ((Hq * Dh) ** -0.5)),
    }

def reference(x, k_cache, v_cache, wq, wo):
    B, Sq, D = x.shape
    Hq, Dh = 32, 128
    Hkv = k_cache.shape[1]
    rep = Hq // Hkv
    q = (lambda x, *d: x.permute(*d))((x @ wq).reshape(B, Sq, Hq, Dh), 0, 2, 1, 3)
    k = (lambda x, n, axis: torch.repeat_interleave(x, n, dim=axis))(k_cache, rep, axis=1)
    v = (lambda x, n, axis: torch.repeat_interleave(x, n, dim=axis))(v_cache, rep, axis=1)
    scores = torch.einsum("bhqd,bhkd->bhqk", q, k) * (Dh ** -0.5)
    p = _softmax(scores, axis=-1)
    o = torch.einsum("bhqk,bhkd->bhqd", p, v)
    return (lambda x, *d: x.permute(*d))(o, 0, 2, 1, 3).reshape(B, Sq, Hq * Dh) @ wo
```

```python
import re

def R(base, n=1):
    return list(range(base, base + n))

def vr(regs, pfx="v"):
    if isinstance(regs, int):
        return _one(regs)
    if len(regs) == 1:
        return _one(regs[0])
    assert regs == list(range(regs[0], regs[0] + len(regs))), regs
    if regs[0] >= 256:
        return "a[%d:%d]" % (regs[0] - 256, regs[-1] - 256)
    return "v[%d:%d]" % (regs[0], regs[-1])

def _one(r):
    return "a%d" % (r - 256) if r >= 256 else "v%d" % r


class E:
    def __init__(self):
        self.lines = []
        self.n = 0
        self.valu_w = {}
        self.trans_w = {}
        self.mfma_w = {}
        self.mfma_c = {}
        self.store_r = {}
        self.sgpr_valu_w = {}
        self.m0_w = -100
        self.lgkm = []
        self.vm = []
        self.stats = {}

    def raw(self, s, states=1):
        self.lines.append("    " + s)
        self.n += states
        op = s.split()[0]
        self.stats[op] = self.stats.get(op, 0) + 1

    def label(self, name):
        self.lines.append(name + ":")

    def comment(self, s):
        self.lines.append("    ; " + s)

    def nop(self, k):
        while k > 0:
            m = min(k, 16)
            self.raw("s_nop %d" % (m - 1), m)
            k -= m

    def _need(self, idx, dist):
        have = self.n - idx - 1
        return max(0, dist - have)

    def _wait_regs(self, regs):
        regs = set(regs)
        last = -1
        for i, d in enumerate(self.lgkm):
            if d & regs:
                last = i
        lg = None
        if last >= 0:
            lg = len(self.lgkm) - 1 - last
            self.lgkm = self.lgkm[last + 1:]
        last = -1
        for i, (t, d) in enumerate(self.vm):
            if d & regs:
                last = i
        vm = None
        if last >= 0:
            vm = len(self.vm) - 1 - last
            self.vm = self.vm[last + 1:]
        if lg is not None or vm is not None:
            s = "s_waitcnt"
            if vm is not None:
                assert vm <= 63
                s += " vmcnt(%d)" % vm
            if lg is not None:
                assert lg <= 15
                s += " lgkmcnt(%d)" % lg
            self.raw(s)

    def wait_vm_tag(self, tag):
        last = -1
        for i, (t, d) in enumerate(self.vm):
            if t == tag:
                last = i
        if last >= 0:
            vm = len(self.vm) - 1 - last
            assert vm <= 63
            self.vm = self.vm[last + 1:]
            self.raw("s_waitcnt vmcnt(%d)" % vm)

    def wait_vm_all(self):
        self.vm = []
        self.raw("s_waitcnt vmcnt(0)")

    def wait_lgkm_all(self):
        if self.lgkm:
            self.lgkm = []
            self.raw("s_waitcnt lgkmcnt(0)")

    def barrier(self):
        self.wait_lgkm_all()
        self.raw("s_barrier")

    def flush_hazards(self):
        self.nop(1)

    def _mfma_dist(self, passes):
        return {2: 5, 4: 8, 8: 12, 16: 20}[passes]

    def valu(self, text, w=(), r=(), trans=False, sr=(), sw=(), perm=False, rfl=False):
        w = list(w); r = list(r)
        self._wait_regs(w + r)
        need = 0
        for x in r:
            if x in self.trans_w and not trans:
                need = max(need, self._need(self.trans_w[x], 1))
            if perm and x in self.valu_w:
                need = max(need, self._need(self.valu_w[x], 2))
            if rfl and x in self.valu_w:
                need = max(need, self._need(self.valu_w[x], 1))
        for x in w + r:
            if x in self.mfma_w:
                idx, p, _ = self.mfma_w[x]
                need = max(need, self._need(idx, self._mfma_dist(p)))
        for x in w:
            if x in self.mfma_c:
                idx, p = self.mfma_c[x]
                need = max(need, self._need(idx, {2: 1, 4: 3, 8: 7, 16: 15}[p]))
            if x in self.store_r:
                need = max(need, self._need(self.store_r[x], 2))
            if x in self.trans_w and not trans:
                need = max(need, self._need(self.trans_w[x], 1))
        for s in sr:
            if s in self.sgpr_valu_w:
                need = max(need, self._need(self.sgpr_valu_w[s], 2))
        self.nop(need)
        idx = self.n
        self.raw(text)
        for x in w:
            self.valu_w[x] = idx
            if trans:
                self.trans_w[x] = idx
            else:
                self.trans_w.pop(x, None)
            self.mfma_w.pop(x, None)
        for s in sw:
            self.sgpr_valu_w[s] = idx

    def mfma(self, d, a, b, c=None, op="v_mfma_f32_16x16x32_bf16", passes=4):
        if c is None:
            c = d
        creg = [] if c == 0 else list(c)
        self._wait_regs(list(a) + list(b) + creg + list(d))
        need = 0
        for x in list(a) + list(b) + creg:
            if x in self.valu_w:
                need = max(need, self._need(self.valu_w[x], 2))
        for x in list(a) + list(b):
            if x in self.mfma_w:
                idx, p, _ = self.mfma_w[x]
                need = max(need, self._need(idx, self._mfma_dist(p)))
        for x in creg:
            if x in self.mfma_w:
                idx, p, t = self.mfma_w[x]
                if t == tuple(creg) and p == passes:
                    need = max(need, self._need(idx, 2 if p == 2 else 0))
                else:
                    need = max(need, self._need(idx, {2: 4, 4: 6, 8: 10, 16: 18}[p]))
        for x in d:
            if x in self.mfma_w and x not in creg:
                idx, p, t = self.mfma_w[x]
                need = max(need, self._need(idx, {2: 4, 4: 6, 8: 10, 16: 18}[p]))
            if x in self.store_r:
                need = max(need, self._need(self.store_r[x], 2))
        self.nop(need)
        idx = self.n
        self.raw("%s %s, %s, %s, %s" % (op, vr(list(d)), vr(list(a)), vr(list(b)), "0" if c == 0 else vr(creg)))
        for x in d:
            self.mfma_w[x] = (idx, passes, tuple(d))
            self.valu_w.pop(x, None)
            self.trans_w.pop(x, None)
        for x in creg:
            self.mfma_c[x] = (idx, passes)

    def _mem_pre(self, rd, wr, sr=()):
        self._wait_regs(list(rd) + list(wr))
        need = 0
        for x in list(rd) + list(wr):
            if x in self.mfma_w:
                idx, p, _ = self.mfma_w[x]
                need = max(need, self._need(idx, self._mfma_dist(p)))
        for x in rd:
            if x in self.trans_w:
                need = max(need, self._need(self.trans_w[x], 1))
        for x in wr:
            if x in self.store_r:
                need = max(need, self._need(self.store_r[x], 2))
            if x in self.mfma_c:
                idx, p = self.mfma_c[x]
                need = max(need, self._need(idx, {2: 1, 4: 3, 8: 7, 16: 15}[p]))
        for s in sr:
            if s in self.sgpr_valu_w:
                need = max(need, self._need(self.sgpr_valu_w[s], 5))
        self.nop(need)

    def ds_read(self, op, dst, addr, off=0):
        assert 0 <= off <= 65535, off
        if len(self.lgkm) >= 15:
            k = len(self.lgkm) - 14
            self.lgkm = self.lgkm[k:]
            self.raw("s_waitcnt lgkmcnt(14)")
        self._mem_pre([addr], dst)
        self.raw("%s %s, %s offset:%d" % (op, vr(list(dst)), vr(addr), off))
        self.lgkm.append(set(dst))
        for x in dst:
            self.valu_w.pop(x, None); self.trans_w.pop(x, None); self.mfma_w.pop(x, None)

    def ds_write(self, op, addr, src, off=0):
        assert 0 <= off <= 65535, off
        if len(self.lgkm) >= 15:
            k = len(self.lgkm) - 14
            self.lgkm = self.lgkm[k:]
            self.raw("s_waitcnt lgkmcnt(14)")
        self._mem_pre([addr] + list(src), [])
        idx = self.n
        self.raw("%s %s, %s offset:%d" % (op, vr(addr), vr(list(src)), off))
        self.lgkm.append(set())
        for x in src:
            self.store_r[x] = idx

    def set_m0(self, text):
        self.m0_w = self.n
        self.raw(text)

    def salu(self, text):
        self.raw(text)

    def dma(self, voff, srd, soff, off=0, flags="", tag=None):
        self._mem_pre([voff], [])
        self.nop(self._need(self.m0_w, 1))
        assert len(self.vm) < 63
        self.raw("buffer_load_dwordx4 %s, %s, %s offen offset:%d %s lds" % (vr(voff), srd, soff, off, flags))
        self.vm.append((tag, set()))

    def bload(self, op, dst, voff, srd, soff, off=0, flags="", tag=None, track=True, rmw=False):
        if rmw:
            self._mem_pre([voff], [])
        else:
            self._mem_pre([voff], dst)
        assert len(self.vm) < 63
        self.raw("%s %s, %s, %s, %s offen offset:%d %s" % (op, vr(list(dst)), vr(voff), srd, soff, off, flags))
        if track:
            self.vm.append((tag, set(dst)))
        for x in dst:
            self.valu_w.pop(x, None); self.trans_w.pop(x, None); self.mfma_w.pop(x, None)

    def bstore(self, op, src, voff, srd, soff, off=0, flags="", tag=None, track=True):
        self._mem_pre([voff] + list(src), [])
        idx = self.n
        assert len(self.vm) < 63
        self.raw("%s %s, %s, %s, %s offen offset:%d %s" % (op, vr(list(src)), vr(voff), srd, soff, off, flags))
        if track:
            self.vm.append((tag, set()))
        for x in src:
            self.store_r[x] = idx

    def text(self):
        return "\n".join(self.lines)
```

```python
import sys, math, struct
from emit import E, R, vr

OPT = dict(kvflags="nt", ostflags="", k2=True)
for a in sys.argv[1:]:
    if "=" in a:
        k, v = a.split("=", 1)
        OPT[k] = v.replace("_", " ") if k.endswith("flags") else eval(v)

def f32bits(x):
    return struct.unpack("<I", struct.pack("<f", x))[0]

WS_O = 0
WS_WOP = 1024 * 36864
SLOT = [0, 16384, 32768, 49152]
AUX = 65536
MISC = 69632
LDS1 = 81920

def gen_attn():
    e = E()
    p = 0
    def alloc(n, align=1):
        nonlocal p
        p = (p + align - 1) // align * align
        r = R(p, n); p += n
        return r
    v_tid = 0
    alloc(1)
    T = alloc(11)
    Q = [[alloc(4, 4) for s in range(4)] for t in range(3)]
    O = [[alloc(4, 4) for u in range(8)] for t in range(3)]
    S = [[alloc(4, 4) for k in range(4)] for t in range(2)]
    S9 = alloc(4, 4)
    N = [alloc(4, 4) for t in range(3)]
    F = [alloc(4, 4) for f in range(8)]
    VA = alloc(8)
    KA = alloc(4)
    K9A = alloc(4)
    L = alloc(3)
    voffK = alloc(1)[0]
    assert p <= 256, p
    voffV = T[10]
    T = T[:10]
    XF = [[[Q[st * 0 + 0][0]] for _ in range(1)] for st in range(2)]
    qflat = [r for t in range(3) for s in range(4) for r in Q[t][s]]
    XF = [[[qflat[st * 24 + (t * 2 + s) * 4: st * 24 + (t * 2 + s) * 4 + 4] for s in range(2)] for t in range(3)] for st in range(2)]
    ACC = [O[0], O[1], O[2][:2]]
    nflat = [r for t in range(3) for r in N[t]]
    xa = nflat[0:2]; x9a = nflat[2:4]
    voffX0, voffX1, voffX9, voffW = nflat[4:8]
    PREP = [S[0][0], S[0][1]]
    PRAW = [S[0][0] + S[1][0], S[0][1] + S[1][1]]
    voffP, voffPS = nflat[8:10]

    sW, sB, sH = "s48", "s49", "s50"
    sKV, sX, sAUX, sOFF9, sC, sFLOOR, sSO, sT2 = "s52", "s53", "s54", "s55", "s56", "s57", "s58", "s59"
    SX, SWQ, SK, SV, SO, SWO, SWP = "s[20:23]", "s[24:27]", "s[28:31]", "s[32:35]", "s[36:39]", "s[40:43]", "s[44:47]"

    def V(text, w=(), r=(), **kw):
        e.valu(text, w, r, **kw)

    e.salu("s_cmp_ge_u32 s2, 1024")
    e.salu("s_cbranch_scc1 L_attn_end")
    e.salu("s_load_dwordx16 s[4:19], s[0:1], 0")
    lane, g, i16, t0, t1, t2 = T[0], T[1], T[2], T[3], T[4], T[5]
    V("v_lshrrev_b32 v%d, 6, v0" % t0, [t0], [0])
    V("v_and_b32 v%d, 63, v0" % lane, [lane], [0])
    V("v_readfirstlane_b32 %s, v%d" % (sW, t0), [], [t0], rfl=True, sw=[sW])
    V("v_lshrrev_b32 v%d, 4, v%d" % (g, lane), [g], [lane])
    V("v_and_b32 v%d, 15, v%d" % (i16, lane), [i16], [lane])
    e.salu("s_and_b32 s3, s2, 7")
    e.salu("s_lshr_b32 s51, s2, 3")
    e.salu("s_and_b32 %s, s3, 3" % sH)
    e.salu("s_lshl_b32 %s, %s, 3" % (sH, sH))
    e.salu("s_and_b32 %s, s51, 7" % sT2)
    e.salu("s_add_u32 %s, %s, %s" % (sH, sH, sT2))
    e.salu("s_lshr_b32 %s, s3, 2" % sB)
    e.salu("s_lshl_b32 %s, %s, 4" % (sB, sB))
    e.salu("s_lshr_b32 %s, s51, 3" % sT2)
    e.salu("s_add_u32 %s, %s, %s" % (sB, sB, sT2))
    e.salu("s_lshl_b32 %s, %s, 11" % (sKV, sW))
    e.salu("s_lshl_b32 %s, %s, 12" % (sX, sW))
    e.salu("s_and_b32 %s, %s, 1" % (sAUX, sW))
    e.salu("s_lshl_b32 %s, %s, 10" % (sAUX, sAUX))
    e.salu("s_lshr_b32 %s, %s, 1" % (sOFF9, sW))
    e.salu("s_lshl_b32 %s, %s, 13" % (sOFF9, sOFF9))
    e.salu("s_add_u32 %s, %s, %s" % (sOFF9, sOFF9, sAUX))
    e.salu("s_mov_b32 %s, 0x%08x" % (sC, f32bits(128 ** -0.5 * math.log2(math.e))))
    V("v_lshrrev_b32 v%d, 3, v%d" % (t0, lane), [t0], [lane])
    V("v_and_b32 v%d, 7, v%d" % (t1, lane), [t1], [lane])
    V("v_xor_b32 v%d, v%d, v%d" % (t1, t1, g), [t1], [t1, g])
    V("v_lshlrev_b32 v%d, 4, v%d" % (t1, t1), [t1], [t1])
    e.salu("s_lshl_b32 %s, %s, 5" % (sT2, sW))
    V("v_add_u32 v%d, %s, v%d" % (t2, sT2, t0), [t2], [t0])
    V("v_mul_u32_u24 v%d, 1280, v%d" % (t2, t2), [t2], [t2])
    V("v_add_u32 v%d, v%d, v%d" % (voffX0, t2, t1), [voffX0], [t2, t1])
    V("v_xor_b32 v%d, 64, v%d" % (voffX1, voffX0), [voffX1], [voffX0])
    e.salu("s_lshr_b32 %s, %s, 7" % (sT2, sAUX))
    e.salu("s_add_u32 %s, %s, 128" % (sT2, sT2))
    V("v_add_u32 v%d, %s, v%d" % (t2, sT2, t0), [t2], [t0])
    V("v_mul_u32_u24 v%d, 1280, v%d" % (t2, t2), [t2], [t2])
    e.salu("s_lshr_b32 %s, %s, 4" % (sT2, sAUX))
    V("v_xor_b32 v%d, %s, v%d" % (t1, sT2, t1), [t1], [t1])
    V("v_add_u32 v%d, v%d, v%d" % (voffX9, t2, t1), [voffX9], [t2, t1])
    e.salu("s_lshl_b32 %s, %s, 3" % (sT2, sW))
    V("v_add_u32 v%d, %s, v%d" % (t0, sT2, g), [t0], [g])
    V("v_lshlrev_b32 v%d, 1, v%d" % (t1, g), [t1], [g])
    e.salu("s_lshr_b32 %s, %s, 7" % (sT2, sAUX))
    V("v_add_u32 v%d, %s, v%d" % (t1, sT2, t1), [t1], [t1])
    V("v_xor_b32 v%d, v%d, v%d" % (t1, t1, i16), [t1], [t1, i16])
    V("v_lshlrev_b32 v%d, 4, v%d" % (t1, t1), [t1], [t1])
    V("v_lshl_add_u32 v%d, v%d, 13, v%d" % (voffW, t0, t1), [voffW], [t0, t1])
    V("v_lshl_add_u32 v%d, v%d, 8, v%d" % (voffV, t0, t1), [voffV], [t0, t1])
    e.salu("s_lshl_b32 %s, %s, 2" % (sT2, sW))
    V("v_add_u32 v%d, %s, v%d" % (t1, sT2, g), [t1], [g])
    V("v_xor_b32 v%d, v%d, v%d" % (t1, t1, i16), [t1], [t1, i16])
    V("v_lshlrev_b32 v%d, 4, v%d" % (t1, t1), [t1], [t1])
    V("v_lshl_add_u32 v%d, v%d, 8, v%d" % (voffK, t0, t1), [voffK], [t0, t1])

    e.raw("s_waitcnt lgkmcnt(0)")
    e.salu("s_mul_i32 %s, %s, 184320" % (sT2, sB))
    e.salu("s_add_u32 s20, s4, %s" % sT2); e.salu("s_addc_u32 s21, s5, 0")
    e.salu("s_mov_b32 s22, 184320"); e.salu("s_mov_b32 s23, 0x20000")
    e.salu("s_lshl_b32 %s, %s, 8" % (sT2, sH))
    e.salu("s_add_u32 s24, s10, %s" % sT2); e.salu("s_addc_u32 s25, s11, 0")
    e.salu("s_sub_u32 s26, 5242880, %s" % sT2); e.salu("s_mov_b32 s27, 0x20000")
    e.salu("s_lshl_b32 s51, %s, 5" % sB)
    e.salu("s_add_u32 s51, s51, %s" % sH)
    e.salu("s_lshl_b32 %s, s51, 17" % sT2)
    e.salu("s_add_u32 s28, s6, %s" % sT2); e.salu("s_addc_u32 s29, s7, 0")
    e.salu("s_mov_b32 s30, 131072"); e.salu("s_mov_b32 s31, 0x20000")
    e.salu("s_add_u32 s32, s8, %s" % sT2); e.salu("s_addc_u32 s33, s9, 0")
    e.salu("s_mov_b32 s34, 131072"); e.salu("s_mov_b32 s35, 0x20000")

    def dma_kv(kind, j, slot):
        srd, voff = (SK, voffK) if kind == "K" else (SV, voffV)
        ops = []
        for a in range(2):
            for b in range(2):
                def f(a=a, b=b):
                    if b == 0:
                        e.set_m0("s_add_u32 m0, %s, %d" % (sKV, SLOT[slot] + 8192 * a))
                        e.salu("s_mov_b32 %s, %d" % (sSO, j * 16384 + 8192 * a))
                    e.dma(voff, srd, sSO, 1024 * b, OPT["kvflags"], tag=(kind, j))
                ops.append(f)
        return ops
    def dma_w(i, slot):
        ops = []
        for a in range(2):
            for b in range(2):
                def f(a=a, b=b):
                    e.set_m0("s_add_u32 m0, %s, %d" % (sKV, SLOT[slot] + 8192 * a + 1024 * b))
                    e.salu("s_mov_b32 %s, %d" % (sSO, (i * 64 + 32 * a + 4 * b) * 8192))
                    e.dma(voffW, SWQ, sSO, 0, "", tag=("W", i))
                ops.append(f)
        return ops
    def dma_x(i, slot):
        ops = []
        for j in range(4):
            def f(j=j):
                e.set_m0("s_add_u32 m0, %s, %d" % (sX, SLOT[slot] + 1024 * j))
                e.salu("s_mov_b32 %s, %d" % (sSO, 128 * i + 10240 * j))
                e.dma(voffX1 if j & 1 else voffX0, SX, sSO, 0, "", tag=("X", i))
            ops.append(f)
        def f9():
            e.set_m0("s_add_u32 m0, %s, %d" % (sAUX, AUX + 2048 * (slot // 2)))
            e.salu("s_mov_b32 %s, %d" % (sSO, 128 * i))
            e.dma(voffX9, SX, sSO, 0, "", tag=("X", i))
        ops.append(f9)
        return ops
    for f in dma_x(0, 0) + dma_w(0, 1) + dma_x(1, 2) + dma_w(1, 3):
        f()

    e.salu("s_mul_i32 %s, s51, 36864" % sT2)
    e.salu("s_add_u32 s36, s18, %s" % sT2); e.salu("s_addc_u32 s37, s19, 0")
    e.salu("s_mov_b32 s38, 36864"); e.salu("s_mov_b32 s39, 0x20000")
    e.salu("s_mov_b32 s40, s12"); e.salu("s_mov_b32 s41, s13")
    e.salu("s_mov_b32 s42, 5242880"); e.salu("s_mov_b32 s43, 0x20000")
    e.salu("s_add_u32 s44, s18, %d" % WS_WOP); e.salu("s_addc_u32 s45, s19, 0")
    e.salu("s_mov_b32 s46, 5242880"); e.salu("s_mov_b32 s47, 0x20000")
    V("v_mul_u32_u24 v%d, 5120, v%d" % (t0, g), [t0], [g])
    V("v_lshl_add_u32 v%d, v%d, 1, v%d" % (t0, i16, t0), [t0], [i16, t0])
    e.salu("s_lshl_b32 %s, %s, 5" % (sT2, sW))
    V("v_add_u32 v%d, %s, v%d" % (voffP, sT2, t0), [voffP], [t0])
    e.salu("s_lshr_b32 s68, s2, 3")
    e.salu("s_and_b32 s69, s2, 7")
    e.salu("s_mul_i32 s70, s68, 40960")
    e.salu("s_mul_i32 s71, s69, 160")
    e.salu("s_add_u32 s70, s70, s71")
    e.salu("s_add_u32 s71, s70, 20480")
    for j in range(8):
        e.bload("buffer_load_ushort", [PRAW[0][(j & 1) * 4 + j // 2]], voffP, SWO,
                "s70" if j < 4 else "s71", (j & 3) * 1280, tag="P")
    e.salu("s_cmp_lg_u32 %s, 3" % sW)
    e.salu("s_cbranch_scc1 L_prep1")
    for j in range(8):
        e.bload("buffer_load_ushort", [PRAW[1][(j & 1) * 4 + j // 2]], voffP, SWO,
                "s70" if j < 4 else "s71", (j & 3) * 1280 + 32, track=False)
    e.label("L_prep1")
    e.salu("s_lshl_b32 s69, s69, 7")
    e.salu("s_add_u32 s69, s69, s68")
    e.salu("s_mul_i32 s69, s69, 5120")
    e.salu("s_lshl_b32 %s, %s, 10" % (sT2, sW))
    e.salu("s_add_u32 s69, s69, %s" % sT2)
    V("v_lshlrev_b32 v%d, 4, v%d" % (voffPS, lane), [voffPS], [lane])

    V("v_lshrrev_b32 v%d, 1, v%d" % (t0, i16), [t0], [i16])
    V("v_xor_b32 v%d, v%d, v%d" % (t0, t0, g), [t0], [t0, g])
    V("v_lshlrev_b32 v%d, 4, v%d" % (t0, t0), [t0], [t0])
    V("v_lshl_add_u32 v%d, v%d, 7, v%d" % (t0, i16, t0), [t0], [i16, t0])
    V("v_add_u32 v%d, %s, v%d" % (xa[0], sX, t0), [xa[0]], [t0])
    V("v_xor_b32 v%d, 64, v%d" % (xa[1], xa[0]), [xa[1]], [xa[0]])
    V("v_add_u32 v%d, %d, v%d" % (x9a[0], AUX, t0), [x9a[0]], [t0])
    V("v_xor_b32 v%d, 64, v%d" % (x9a[1], x9a[0]), [x9a[1]], [x9a[0]])
    V("v_lshrrev_b32 v%d, 2, v%d" % (t0, i16), [t0], [i16])
    V("v_and_b32 v%d, 1, v%d" % (t1, g), [t1], [g])
    V("v_lshl_add_u32 v%d, v%d, 2, v%d" % (t1, t1, t0), [t1], [t1, t0])
    e.salu("s_lshl_b32 %s, %s, 1" % (sT2, sW))
    V("v_xor_b32 v%d, %s, v%d" % (t1, sT2, t1), [t1], [t1])
    V("v_lshlrev_b32 v%d, 5, v%d" % (t1, t1), [t1], [t1])
    V("v_lshl_add_u32 v%d, v%d, 3, v%d" % (t2, g, t0), [t2], [g, t0])
    V("v_lshl_add_u32 v%d, v%d, 8, v%d" % (t1, t2, t1), [t1], [t2, t1])
    V("v_and_b32 v%d, 3, v%d" % (t2, i16), [t2], [i16])
    V("v_lshl_add_u32 v%d, v%d, 3, v%d" % (VA[0], t2, t1), [VA[0]], [t2, t1])
    for u in range(1, 8):
        V("v_xor_b32 v%d, %d, v%d" % (VA[u], u << 5, VA[0]), [VA[u]], [VA[0]])
    V("v_lshl_add_u32 v%d, v%d, 3, v%d" % (t0, t0, t2), [t0], [t0, t2])
    V("v_xor_b32 v%d, v%d, v%d" % (t1, g, i16), [t1], [g, i16])
    V("v_lshlrev_b32 v%d, 4, v%d" % (t1, t1), [t1], [t1])
    e.salu("s_lshl_b32 %s, %s, 6" % (sT2, sW))
    V("v_xor_b32 v%d, %s, v%d" % (t1, sT2, t1), [t1], [t1])
    V("v_lshl_add_u32 v%d, v%d, 8, v%d" % (KA[0], t0, t1), [KA[0]], [t0, t1])
    for s in range(1, 4):
        V("v_xor_b32 v%d, %d, v%d" % (KA[s], s << 6, KA[0]), [KA[s]], [KA[0]])
    for s in range(4):
        V("v_add_u32 v%d, %s, v%d" % (K9A[s], sOFF9, KA[s]), [K9A[s]], [KA[s]])
    e.salu("s_getpc_b64 s[60:61]")
    e.label("L_pc0")
    e.salu("s_add_u32 s60, s60, L_rescale-L_pc0")
    e.salu("s_addc_u32 s61, s61, 0")
    lane16 = T[0]
    V("v_lshlrev_b32 v%d, 4, v%d" % (lane16, lane), [lane16], [lane])

    def xreads(i):
        st = i % 2; slot = 2 * (i % 2)
        ops = []
        for s in range(2):
            for t in range(2):
                ops.append(lambda s=s, t=t: e.ds_read("ds_read_b128", XF[st][t][s], xa[s], SLOT[slot] + 2048 * t))
            ops.append(lambda s=s: e.ds_read("ds_read_b128", XF[st][2][s], x9a[s], 2048 * (slot // 2)))
        return ops

    def tr_frag(buf, addr, off):
        e.ds_read("ds_read_b64_tr_b16", buf[0:2], addr, off)
        e.ds_read("ds_read_b64_tr_b16", buf[2:4], addr, off + 1024)

    e.wait_vm_tag(("X", 0))
    e.barrier()
    for f in xreads(0):
        f()
    NB = 7
    for i in range(10):
        e.comment("qproj step %d" % i)
        e.wait_vm_tag(("W", i))
        if i < 9:
            e.wait_vm_tag(("X", i + 1))
        e.barrier()
        wslot = 1 + 2 * (i % 2)
        side = []
        if i >= 1:
            side += dma_w(i + 1, 1 + 2 * ((i + 1) % 2)) if i + 1 <= 9 else dma_kv("V", 0, 1)
        side += dma_x(i + 2, 2 * (i % 2)) if i + 2 <= 9 else dma_kv("K", i + 2 - 10, 2 * (i % 2))
        if i == 9:
            pass
        if i == 1:
            def prep_store():
                for fr in range(2):
                    for k in range(4):
                        V("v_lshl_or_b32 v%d, v%d, 16, v%d" % (PRAW[fr][k], PRAW[fr][4 + k], PRAW[fr][k]), [PRAW[fr][k]], [PRAW[fr][k], PRAW[fr][4 + k]])
                e.bstore("buffer_store_dwordx4", PREP[0], voffPS, SWP, "s69", 0)
                e.salu("s_cmp_lg_u32 %s, 3" % sW)
                e.salu("s_cbranch_scc1 L_prep2")
                e.bstore("buffer_store_dwordx4", PREP[1], voffPS, SWP, "s69", 1024, track=False)
                e.label("L_prep2")
            side.append(prep_store)
        xr = xreads(i + 1) if i < 9 else []
        seq = [(s, u) for s in range(2) for u in range(8)]
        for f in range(NB):
            s, u = seq[f]
            tr_frag(F[f % 8], VA[u], SLOT[wslot] + 8192 * s)
        st = i % 2
        for f, (s, u) in enumerate(seq):
            buf = F[f % 8]
            first = (i == 0 and s == 0)
            e.mfma(ACC[0][u], buf, XF[st][0][s], 0 if first else None)
            e.mfma(ACC[1][u], buf, XF[st][1][s], 0 if first else None)
            if u < 2:
                e.mfma(ACC[2][u], buf, XF[st][2][s], 0 if first else None)
            if f + NB < 16:
                s2, u2 = seq[f + NB]
                tr_frag(F[(f + NB) % 8], VA[u2], SLOT[wslot] + 8192 * s2)
            elif xr:
                xr.pop(0)()
            if side:
                side.pop(0)()
        while side:
            side.pop(0)()
        while xr:
            xr.pop(0)()

    def qpack(dst, ta, tb):
        for k in range(4):
            V("v_mul_f32 v%d, %s, v%d" % (ta[k], sC, ta[k]), [ta[k]], [ta[k]])
        for k in range(4):
            V("v_mul_f32 v%d, %s, v%d" % (tb[k], sC, tb[k]), [tb[k]], [tb[k]])
        V("v_cvt_pk_bf16_f32 v%d, v%d, v%d" % (dst[0], ta[0], ta[1]), [dst[0]], ta[0:2])
        V("v_cvt_pk_bf16_f32 v%d, v%d, v%d" % (dst[1], ta[2], ta[3]), [dst[1]], ta[2:4])
        V("v_cvt_pk_bf16_f32 v%d, v%d, v%d" % (dst[2], tb[0], tb[1]), [dst[2]], tb[0:2])
        V("v_cvt_pk_bf16_f32 v%d, v%d, v%d" % (dst[3], tb[2], tb[3]), [dst[3]], tb[2:4])
    def qswap(dst):
        for op in ("v_permlane32_swap_b32", "v_permlane16_swap_b32"):
            V("%s v%d, v%d" % (op, dst[0], dst[2]), [dst[0], dst[2]], [dst[0], dst[2]], perm=True)
            V("%s v%d, v%d" % (op, dst[1], dst[3]), [dst[1], dst[3]], [dst[1], dst[3]], perm=True)
    qpack(S9, ACC[2][0], ACC[2][1])
    q9w = T[1]
    e.salu("s_lshl_b32 %s, %s, 10" % (sT2, sW))
    e.salu("s_add_u32 %s, %s, %d" % (sT2, sT2, MISC))
    V("v_add_u32 v%d, %s, v%d" % (q9w, sT2, lane16), [q9w], [lane16])
    qswap(S9)
    e.ds_write("ds_write_b128", q9w, S9, 0)
    for t in range(2):
        for pp in range(4):
            qpack(Q[t][pp], ACC[t][2 * pp], ACC[t][2 * pp + 1])
        for pp in range(4):
            qswap(Q[t][pp])
    for t in range(3):
        V("v_mov_b32 v%d, 0" % L[t], [L[t]])
        for k in range(4):
            V("v_mov_b32 v%d, 0" % N[t][k], [N[t][k]])

    mxa, mxb, ta0, ta1 = T[2], T[3], T[4], T[5]
    r0, r1 = T[6], T[7]

    def xlane(reg, tmp, op):
        for pop in ("v_permlane32_swap_b32", "v_permlane16_swap_b32"):
            V("v_mov_b32 v%d, v%d" % (tmp, reg), [tmp], [reg])
            V("%s v%d, v%d" % (pop, reg, tmp), [reg, tmp], [reg, tmp], perm=True)
            V("%s v%d, v%d, v%d" % (op, reg, reg, tmp), [reg], [reg, tmp])

    def rescale(first):
        for t in range(3):
            sr = [x for k in range(4) for x in S[t][k]] if t < 2 else list(S9)
            V("v_max3_f32 v%d, v%d, v%d, v%d" % (r0, sr[0], sr[1], sr[2]), [r0], sr[0:3])
            k = 3
            while k < len(sr):
                if k + 1 < len(sr):
                    V("v_max3_f32 v%d, v%d, v%d, v%d" % (r0, r0, sr[k], sr[k + 1]), [r0], [r0, sr[k], sr[k + 1]])
                    k += 2
                else:
                    V("v_max_f32 v%d, v%d, v%d" % (r0, r0, sr[k]), [r0], [r0, sr[k]])
                    k += 1
            xlane(r0, r1, "v_max_f32")
            if not first:
                V("v_max_f32 v%d, 0, v%d" % (r0, r0), [r0], [r0])
            for x in sr:
                V("v_sub_f32 v%d, v%d, v%d" % (x, x, r0), [x], [x, r0])
            for x in N[t]:
                V("v_sub_f32 v%d, v%d, v%d" % (x, x, r0), [x], [x, r0])
            if not first:
                V("v_exp_f32_e64 v%d, -v%d" % (r1, r0), [r1], [r0], trans=True)
                V("v_mul_f32 v%d, v%d, v%d" % (L[t], L[t], r1), [L[t]], [L[t], r1])
                for u in range(8):
                    for x in O[t][u]:
                        V("v_mul_f32 v%d, v%d, v%d" % (x, x, r1), [x], [x, r1])

    def EXP(x):
        return lambda: V("v_exp_f32 v%d, v%d" % (x, x), [x], [x], trans=True)
    def ADD(t, x):
        return lambda: V("v_add_f32 v%d, v%d, v%d" % (L[t], L[t], x), [L[t]], [L[t], x])
    def CVT(d, a, b):
        return lambda: V("v_cvt_pk_bf16_f32 v%d, v%d, v%d" % (d, a, b), [d], [a, b])

    for j in range(8):
        e.comment("K step %d" % j)
        kslot = 2 * (j % 2)
        e.wait_vm_tag(("K", j))
        e.barrier()
        side = dma_kv("V", j + 1, 1 + 2 * ((j + 1) % 2)) if j + 1 <= 7 else []
        if j == 0:
            for sp in range(4):
                V("v_xor_b32 v%d, %d, v%d" % (ta0, sp << 10, q9w), [ta0], [q9w])
                e.ds_read("ds_read_b128", Q[2][sp], ta0, 0)
        seq = [(0, s) for s in range(4)] + [(9, s) for s in range(4)] + [(k, s) for k in range(1, 4) for s in range(4)]
        def kread(f):
            k, s = seq[f]
            if k == 9:
                e.ds_read("ds_read_b128", F[f % 8], K9A[s], SLOT[kslot])
            else:
                e.ds_read("ds_read_b128", F[f % 8], KA[s], SLOT[kslot] + 8192 * (k >> 1) + 1024 * (k & 1))
        for f in range(8):
            kread(f)
        mx = []
        firstmax = [True, True]
        def MAX3(acc, idx, a, b):
            def f():
                if firstmax[idx]:
                    V("v_max_f32 v%d, v%d, v%d" % (acc, a, b), [acc], [a, b])
                    firstmax[idx] = False
                else:
                    V("v_max3_f32 v%d, v%d, v%d, v%d" % (acc, acc, a, b), [acc], [acc, a, b])
            return f
        ready = []
        for f, (k, s) in enumerate(seq):
            buf = F[f % 8]
            if k == 9:
                e.mfma(S9, buf, Q[2][s], N[2] if s == 0 else None)
            else:
                e.mfma(S[0][k], buf, Q[0][s], N[0] if s == 0 else None)
                e.mfma(S[1][k], buf, Q[1][s], N[1] if s == 0 else None)
            if f + 8 < len(seq):
                kread(f + 8)
            if side:
                side.pop(0)()
            if j > 0:
                if mx and mx[0][0] <= f:
                    mx.pop(0)[1]()
                if s == 3:
                    if k == 9:
                        mx += [(f + 4, MAX3(mxa, 0, S9[0], S9[1])), (f + 4, MAX3(mxb, 1, S9[2], S9[3]))]
                    else:
                        mx += [(f + 3, MAX3(mxa, 0, S[0][k][0], S[0][k][1])), (f + 3, MAX3(mxb, 1, S[0][k][2], S[0][k][3])),
                               (f + 3, MAX3(mxa, 0, S[1][k][0], S[1][k][1])), (f + 3, MAX3(mxb, 1, S[1][k][2], S[1][k][3]))]
        while side:
            side.pop(0)()
        if j == 0:
            rescale(True)
        else:
            while mx:
                mx.pop(0)[1]()
            V("v_max_f32 v%d, v%d, v%d" % (mxa, mxa, mxb), [mxa], [mxa, mxb])
            V("v_cmp_lt_f32 vcc, 0x41000000, v%d" % mxa, [], [mxa])
            e.salu("s_cbranch_vccz L_nors%d" % j)
            e.salu("s_swappc_b64 s[62:63], s[60:61]")
            e.label("L_nors%d" % j)
        for t in range(2):
            for x in S[t][0] + S[t][1]:
                EXP(x)()
        for t in range(2):
            for x in S[t][0]:
                ADD(t, x)()
        for t in range(2):
            a, b = S[t][0], S[t][1]
            CVT(a[0], a[0], a[1])(); CVT(a[1], a[2], a[3])(); CVT(a[2], b[0], b[1])(); CVT(a[3], b[2], b[3])()

        e.comment("V step %d" % j)
        vslot = 1 + 2 * (j % 2)
        e.wait_vm_tag(("V", j))
        e.barrier()
        side = dma_kv("K", j + 2, 2 * (j % 2)) if j + 2 <= 7 else []
        w0 = []
        for t in range(2):
            w0 += [ADD(t, x) for x in S[t][1]]
        for t in range(2):
            w0 += [EXP(x) for x in S[t][2] + S[t][3]]
        for t in range(2):
            d, a, b = S[t][1], S[t][2], S[t][3]
            w0 += [CVT(d[0], a[0], a[1]), CVT(d[1], a[2], a[3]), CVT(d[2], b[0], b[1]), CVT(d[3], b[2], b[3])]
        w1 = [EXP(x) for x in S9]
        for t in range(2):
            w1 += [ADD(t, x) for x in S[t][2] + S[t][3]]
        w1 += [ADD(2, x) for x in S9]
        w1 += [CVT(S9[0], S9[0], S9[1]), CVT(S9[1], S9[2], S9[3])]
        seq = [(s, u) for s in range(2) for u in range(8)] + [(9, u) for u in range(0, 8, 2)]
        def vread(f):
            s, u = seq[f]
            buf = F[f % 8]
            if s == 9:
                V("v_add_u32 v%d, %s, v%d" % (ta0, sOFF9, VA[u]), [ta0], [VA[u]])
                V("v_add_u32 v%d, %s, v%d" % (ta1, sOFF9, VA[u + 1]), [ta1], [VA[u + 1]])
                e.ds_read("ds_read_b64_tr_b16", buf[0:2], ta0, SLOT[vslot])
                e.ds_read("ds_read_b64_tr_b16", buf[2:4], ta1, SLOT[vslot])
            else:
                tr_frag(buf, VA[u], SLOT[vslot] + 8192 * s)
        for f in range(NB):
            vread(f)
        for f, (s, u) in enumerate(seq):
            buf = F[f % 8]
            if s == 1 and u == 0:
                while w0:
                    w0.pop(0)()
            if s == 9:
                while w1:
                    w1.pop(0)()
                c = 0 if j == 0 else None
                e.mfma(O[2][u], buf[0:2], S9[0:2], c, op="v_mfma_f32_16x16x16_bf16")
                e.mfma(O[2][u + 1], buf[2:4], S9[0:2], c, op="v_mfma_f32_16x16x16_bf16")
            else:
                c = 0 if (j == 0 and s == 0) else None
                ws = w0 if s == 0 else w1
                e.mfma(O[0][u], buf, S[0][s], c)
                for _ in range(2):
                    if ws: ws.pop(0)()
                e.mfma(O[1][u], buf, S[1][s], c)
                for _ in range(2):
                    if ws: ws.pop(0)()
            if f + NB < len(seq):
                vread(f + NB)
            if side:
                side.pop(0)()

    xlane(L[2], r1, "v_add_f32")
    mrg = T[2]; st = T[3]
    V("v_lshrrev_b32 v%d, 1, v%d" % (st, lane16), [st], [lane16])
    e.salu("s_lshl_b32 %s, %s, 9" % (sT2, sW))
    e.salu("s_add_u32 %s, %s, %d" % (sT2, sT2, MISC + 4096))
    V("v_add_u32 v%d, %s, v%d" % (st, sT2, st), [st], [st])
    V("v_mov_b32 v%d, v%d" % (N[2][1], L[2]), [N[2][1]], [L[2]])
    e.ds_write("ds_write_b64", st, N[2][0:2], 0)
    e.salu("s_mul_i32 %s, %s, 10240" % (sT2, sW))
    V("v_add_u32 v%d, %s, v%d" % (mrg, sT2, lane16), [mrg], [lane16])
    for pp in range(1, 4):
        V("v_xor_b32 v%d, %d, v%d" % (ta0, pp << 13, mrg), [ta0], [mrg])
        e.ds_write("ds_write_b128", ta0, O[2][2 * pp], 0)
        e.ds_write("ds_write_b128", ta0, O[2][2 * pp + 1], 1024)
    for pp in range(4):
        e.salu("s_xor_b32 s%d, %s, %d" % (64 + pp, sW, pp))
        e.salu("s_mul_i32 s%d, s%d, 9216" % (64 + pp, 64 + pp))
        e.salu("s_lshl_b32 %s, %s, 11" % (sT2, sW))
        e.salu("s_add_u32 s%d, s%d, %s" % (64 + pp, 64 + pp, sT2))
    def opack(dst, ta, tb, f):
        for x in ta + tb:
            V("v_mul_f32 v%d, v%d, v%d" % (x, x, f), [x], [x, f])
        V("v_cvt_pk_bf16_f32 v%d, v%d, v%d" % (dst[0], ta[0], ta[1]), [dst[0]], ta[0:2])
        V("v_cvt_pk_bf16_f32 v%d, v%d, v%d" % (dst[1], ta[2], ta[3]), [dst[1]], ta[2:4])
        V("v_cvt_pk_bf16_f32 v%d, v%d, v%d" % (dst[2], tb[0], tb[1]), [dst[2]], tb[0:2])
        V("v_cvt_pk_bf16_f32 v%d, v%d, v%d" % (dst[3], tb[2], tb[3]), [dst[3]], tb[2:4])
    for t in range(2):
        xlane(L[t], r1, "v_add_f32")
        V("v_rcp_f32 v%d, v%d" % (L[t], L[t]), [L[t]], [L[t]], trans=True)
        for pp in range(4):
            dst = F[(t * 4 + pp) % 8]
            opack(dst, O[t][2 * pp], O[t][2 * pp + 1], L[t])
            e.bstore("buffer_store_dwordx4", dst, lane16, SO, "s%d" % (64 + pp), 1024 * t, OPT["ostflags"])
    e.barrier()
    ST = [S[0][0][0:2], S[0][0][2:4], S[0][1][0:2]]
    OP = [[S[1][0], S[1][1]], [S[1][2], S[1][3]], [S[0][2], S[0][3]]]
    for pp in range(1, 4):
        V("v_xor_b32 v%d, %d, v%d" % (ta0, pp << 9, st), [ta0], [st])
        e.ds_read("ds_read_b64", ST[pp - 1], ta0, 0)
        V("v_xor_b32 v%d, %d, v%d" % (ta1, pp << 11, mrg), [ta1], [mrg])
        e.ds_read("ds_read_b128", OP[pp - 1][0], ta1, 0)
        e.ds_read("ds_read_b128", OP[pp - 1][1], ta1, 1024)
    nm = r0
    V("v_min3_f32 v%d, v%d, v%d, v%d" % (nm, N[2][0], ST[0][0], ST[1][0]), [nm], [N[2][0], ST[0][0], ST[1][0]])
    V("v_min_f32 v%d, v%d, v%d" % (nm, nm, ST[2][0]), [nm], [nm, ST[2][0]])
    fs = [N[2][0], ST[0][0], ST[1][0], ST[2][0]]
    ls = [N[2][1], ST[0][1], ST[1][1], ST[2][1]]
    for x in fs:
        V("v_sub_f32 v%d, v%d, v%d" % (x, nm, x), [x], [nm, x])
    for x in fs:
        V("v_exp_f32 v%d, v%d" % (x, x), [x], [x], trans=True)
    V("v_mul_f32 v%d, v%d, v%d" % (r1, fs[0], ls[0]), [r1], [fs[0], ls[0]])
    for k in range(1, 4):
        V("v_fmac_f32 v%d, v%d, v%d" % (r1, fs[k], ls[k]), [r1], [r1, fs[k], ls[k]])
    V("v_rcp_f32 v%d, v%d" % (r1, r1), [r1], [r1], trans=True)
    own = O[2][0] + O[2][1]
    for x in own:
        V("v_mul_f32 v%d, v%d, v%d" % (x, x, fs[0]), [x], [x, fs[0]])
    for k in range(1, 4):
        for x, y in zip(own, OP[k - 1][0] + OP[k - 1][1]):
            V("v_fmac_f32 v%d, v%d, v%d" % (x, y, fs[k]), [x], [x, y, fs[k]])
    dst = S9
    opack(dst, O[2][0], O[2][1], r1)
    e.salu("s_mul_i32 %s, %s, 9216" % (sT2, sW))
    e.salu("s_add_u32 %s, %s, 8192" % (sT2, sT2))
    e.bstore("buffer_store_dwordx4", dst, lane16, SO, sT2, 0, OPT["ostflags"])
    e.label("L_attn_end")
    e.raw("s_endpgm")
    e.label("L_rescale")
    e.lgkm = []; e.vm = []
    e.nop(8)
    rescale(False)
    e.nop(4)
    e.raw("s_setpc_b64 s[62:63]")
    return e

LDS2 = 4 * 35 * 1024
def gen_oproj():
    e = E()
    def V(text, w=(), r=(), **kw):
        e.valu(text, w, r, **kw)
    NS = 4
    STG = [[R(16 + st * 56 + f * 4, 4) for f in range(14)] for st in range(NS)]
    ACC = [[R(256 + (q * 5 + n) * 4, 4) for n in range(5)] for q in range(9)]
    lane16, vo, vw, t0, t1, t2 = 1, 2, 3, 4, 5, 6
    sW, sB, sN, sT = "s48", "s49", "s50", "s51"
    SOF, SWP, SOUT = "s[20:23]", "s[24:27]", "s[28:31]"
    e.salu("s_cmp_ge_u32 s2, 256")
    e.salu("s_cbranch_scc1 L_op_end")
    e.salu("s_load_dwordx16 s[4:19], s[0:1], 0")
    V("v_lshrrev_b32 v%d, 6, v0" % t0, [t0], [0])
    V("v_and_b32 v%d, 63, v0" % t1, [t1], [0])
    V("v_readfirstlane_b32 %s, v%d" % (sW, t0), [], [t0], rfl=True, sw=[sW])
    V("v_lshlrev_b32 v%d, 4, v%d" % (lane16, t1), [lane16], [t1])
    e.salu("s_and_b32 %s, s2, 7" % sB)
    e.salu("s_lshl_b32 %s, %s, 2" % (sB, sB))
    e.salu("s_lshr_b32 %s, s2, 6" % sT)
    e.salu("s_add_u32 %s, %s, %s" % (sB, sB, sT))
    e.salu("s_lshr_b32 %s, s2, 3" % sN)
    e.salu("s_and_b32 %s, %s, 7" % (sN, sN))
    for pp in range(4):
        e.salu("s_xor_b32 s%d, %s, %d" % (52 + pp, sW, pp))
        e.salu("s_lshl_b32 s%d, s%d, 11" % (52 + pp, 52 + pp))
    e.salu("s_mov_b32 s56, 8192")
    e.salu("s_mov_b32 s57, 4096")
    e.salu("s_mul_i32 %s, %s, %d" % (sT, sW, 32 * 9216))
    V("v_add_u32 v%d, %s, v%d" % (vo, sT, lane16), [vo], [lane16])
    e.salu("s_mul_i32 %s, %s, %d" % (sT, sW, 32 * 5120))
    V("v_add_u32 v%d, %s, v%d" % (vw, sT, lane16), [vw], [lane16])
    e.raw("s_waitcnt lgkmcnt(0)")
    e.salu("s_mul_i32 %s, %s, %d" % (sT, sB, 32 * 36864))
    e.salu("s_add_u32 s20, s18, %s" % sT); e.salu("s_addc_u32 s21, s19, 0")
    e.salu("s_mov_b32 s22, %d" % (32 * 36864)); e.salu("s_mov_b32 s23, 0x20000")
    e.salu("s_mul_i32 %s, %s, 655360" % (sT, sN))
    e.salu("s_add_u32 %s, %s, %d" % (sT, sT, WS_WOP))
    e.salu("s_add_u32 s24, s18, %s" % sT); e.salu("s_addc_u32 s25, s19, 0")
    e.salu("s_mov_b32 s26, 655360"); e.salu("s_mov_b32 s27, 0x20000")
    e.salu("s_mul_i32 %s, %s, 184320" % (sT, sB))
    e.salu("s_add_u32 s28, s14, %s" % sT); e.salu("s_addc_u32 s29, s15, 0")
    e.salu("s_mov_b32 s30, 184320"); e.salu("s_mov_b32 s31, 0x20000")

    def loads(t):
        st = STG[t % NS]
        ops = []
        for n in range(5):
            ops.append(lambda n=n: e.bload("buffer_load_dwordx4", st[9 + n], vw, SWP, "s57" if n == 4 else "0", 1024 * (n & 3) if n < 4 else 0))
        for q in range(9):
            ops.append(lambda q=q: e.bload("buffer_load_dwordx4", st[q], vo, SOF, "s56" if q == 8 else "s%d" % (52 + q // 2), 1024 * (q & 1) if q < 8 else 0))
        def adv():
            V("v_add_u32 v%d, 9216, v%d" % (vo, vo), [vo], [vo])
            V("v_add_u32 v%d, 5120, v%d" % (vw, vw), [vw], [vw])
        ops.append(adv)
        return ops
    for t in range(NS - 1):
        for f in loads(t):
            f()
    for t in range(32):
        e.comment("kstep %d" % t)
        st = STG[t % NS]
        side = loads(t + NS - 1) if t + NS - 1 < 32 else []
        cnt = 0
        for q in range(9):
            for n in range(5):
                e.mfma(ACC[q][n], st[9 + n], st[q], 0 if t == 0 else None)
                cnt += 1
                if side and cnt % 3 == 0:
                    side.pop(0)()
        while side:
            side.pop(0)()
    TMP = [R(16 + k * 4, 4) for k in range(56)]
    wa = t0
    for pp in range(1, 4):
        e.salu("s_xor_b32 %s, %s, %d" % (sT, sW, pp))
        e.salu("s_mul_i32 %s, %s, 30720" % (sT, sT))
        e.salu("s_add_u32 %s, %s, %d" % (sT, sT, (pp - 1) * 10240))
        V("v_add_u32 v%d, %s, v%d" % (wa, sT, lane16), [wa], [lane16])
        for qq in range(2):
            for n in range(5):
                e.ds_write("ds_write_b128", wa, ACC[2 * pp + qq][n], (qq * 5 + n) * 1024)
    e.salu("s_mul_i32 %s, %s, 5120" % (sT, sW))
    e.salu("s_add_u32 %s, %s, %d" % (sT, sT, 122880))
    V("v_add_u32 v%d, %s, v%d" % (wa, sT, lane16), [wa], [lane16])
    for n in range(5):
        e.ds_write("ds_write_b128", wa, ACC[8][n], n * 1024)
    e.barrier()
    ra = t1
    e.salu("s_mul_i32 %s, %s, 30720" % (sT, sW))
    V("v_add_u32 v%d, %s, v%d" % (ra, sT, lane16), [ra], [lane16])
    vout = t2
    V("v_and_b32 v%d, 15, v0" % vout, [vout], [0])
    V("v_mul_u32_u24 v%d, 1280, v%d" % (vout, vout), [vout], [vout])
    V("v_bfe_u32 v7, v0, 4, 2", [7], [0])
    V("v_lshl_add_u32 v%d, v7, 3, v%d" % (vout, vout), [vout], [7, vout])
    e.salu("s_mul_i32 s58, %s, 160" % sN)
    e.salu("s_mul_i32 %s, %s, %d" % (sT, sW, 32 * 1280))
    e.salu("s_add_u32 s59, s58, %s" % sT)
    e.salu("s_add_u32 s60, s59, %d" % (16 * 1280))
    RES = [R(8, 2), R(10, 2), R(12, 2), R(14, 2)]
    k = 0
    for qq in range(2):
        for n in range(5):
            bufs = [TMP[(k * 4 + x) % 56] for x in range(4)]
            for sl in range(3):
                e.ds_read("ds_read_b128", bufs[sl], ra, sl * 10240 + (qq * 5 + n) * 1024)
            for x in range(4):
                V("v_accvgpr_read_b32 v%d, %s" % (bufs[3][x], vr(ACC[qq][n][x])), [bufs[3][x]], [ACC[qq][n][x]])
            k += 1
    k = 0
    for qq in range(2):
        for n in range(5):
            bufs = [TMP[(k * 4 + x) % 56] for x in range(4)]
            for sl in range(3):
                for x in range(4):
                    V("v_add_f32 v%d, v%d, v%d" % (bufs[3][x], bufs[3][x], bufs[sl][x]), [bufs[3][x]], [bufs[3][x], bufs[sl][x]])
            res = RES[k % 4]
            V("v_cvt_pk_bf16_f32 v%d, v%d, v%d" % (res[0], bufs[3][0], bufs[3][1]), [res[0]], bufs[3][0:2])
            V("v_cvt_pk_bf16_f32 v%d, v%d, v%d" % (res[1], bufs[3][2], bufs[3][3]), [res[1]], bufs[3][2:4])
            e.bstore("buffer_store_dwordx2", res, vout, SOUT, "s59" if qq == 0 else "s60", n * 32)
            k += 1
    e.salu("s_lshl_b32 %s, %s, 10" % (sT, sW))
    e.salu("s_add_u32 %s, %s, 122880" % (sT, sT))
    V("v_add_u32 v%d, %s, v%d" % (ra, sT, lane16), [ra], [lane16])
    e.salu("s_lshl_b32 %s, %s, 5" % (sT, sW))
    e.salu("s_add_u32 s59, s58, %s" % sT)
    e.salu("s_add_u32 s59, s59, %d" % (128 * 1280))
    def q8(extra, tb):
        bufs = [TMP[tb + x] for x in range(4)]
        for sl in range(4):
            e.ds_read("ds_read_b128", bufs[sl], ra, sl * 5120 + extra * 1024)
        for sl in range(1, 4):
            for x in range(4):
                V("v_add_f32 v%d, v%d, v%d" % (bufs[0][x], bufs[0][x], bufs[sl][x]), [bufs[0][x]], [bufs[0][x], bufs[sl][x]])
        res = bufs[1][0:2]
        V("v_cvt_pk_bf16_f32 v%d, v%d, v%d" % (res[0], bufs[0][0], bufs[0][1]), [res[0]], bufs[0][0:2])
        V("v_cvt_pk_bf16_f32 v%d, v%d, v%d" % (res[1], bufs[0][2], bufs[0][3]), [res[1]], bufs[0][2:4])
        e.bstore("buffer_store_dwordx2", res, vout, SOUT, "s59", extra * 32)
    q8(0, 40)
    e.salu("s_cmp_lg_u32 %s, 3" % sW)
    e.salu("s_cbranch_scc1 L_op_end")
    q8(1, 44)
    e.label("L_op_end")
    e.raw("s_endpgm")
    return e

def kd(name, vgpr, accum, sgpr=96):
    return "\n".join([
        ".amdhsa_kernel %s" % name,
        "  .amdhsa_next_free_vgpr %d" % vgpr,
        "  .amdhsa_next_free_sgpr %d" % sgpr,
        "  .amdhsa_accum_offset %d" % accum,
        "  .amdhsa_group_segment_fixed_size 0",
        "  .amdhsa_kernarg_size 64",
        "  .amdhsa_user_sgpr_count 2",
        "  .amdhsa_user_sgpr_kernarg_segment_ptr 1",
        "  .amdhsa_system_sgpr_workgroup_id_x 1",
        ".end_amdhsa_kernel"])

hdr = open("standalone__gqa_block_cached__near_ridge.s.ref").read().split("; Override")[0]
out = [hdr.rstrip()]
out.append("; @launch kernel=attn_kernel grid=(1024,1,1) block=(256,1,1) lds=%d" % LDS1)
if OPT["k2"]:
    out.append("; @launch kernel=oproj_kernel grid=(256,1,1) block=(256,1,1) lds=%d" % LDS2)
out.append('.amdgcn_target "amdgcn-amd-amdhsa--gfx950"')
out.append(".text")
a = gen_attn()
out.append(".globl attn_kernel\n.p2align 8\n.type attn_kernel,@function\nattn_kernel:")
out.append(a.text())
o = gen_oproj()
out.append(".globl oproj_kernel\n.p2align 8\n.type oproj_kernel,@function\noproj_kernel:")
out.append(o.text())
out.append('.section .rodata,"a"\n.p2align 6')
out.append(kd("attn_kernel", 256, 256))
out.append(".p2align 6")
out.append(kd("oproj_kernel", 256 + 180, 256))
print("\n".join(out))
sys.stderr.write("attn stats: %s\n" % sorted(a.stats.items(), key=lambda x: -x[1])[:14])
sys.stderr.write("oproj stats: %s\n" % sorted(o.stats.items(), key=lambda x: -x[1])[:10])
```
